```python
import torch

def _softmax(x, axis=-1):
    return torch.softmax(x, dim=axis)
def _gelu(x):
    return torch.nn.functional.gelu(x, approximate="tanh")
def _silu(x):
    return torch.nn.functional.silu(x)
def _sigmoid(x):
    return torch.sigmoid(x)
def _layernorm(x, axis=-1, eps=1e-5):
    m = x.mean(dim=axis, keepdim=True)
    v = x.var(dim=axis, keepdim=True, unbiased=False)
    return (x - m) / torch.sqrt(v + eps)
def _scatter_add(tgt, idx, src, axis=0):
    return tgt.clone().index_add_(axis, idx, src)
def _segment_sum(src, seg, n):
    out = torch.zeros((n,) + src.shape[1:], dtype=src.dtype)
    return out.index_add_(0, seg, src)
def _pad(x, pw):
    flat = tuple(v for pair in reversed(pw) for v in pair)
    return torch.nn.functional.pad(x, flat)

kernel_name = 'standalone__fft_conv__vision'

def setup_inputs():

    _w = (lambda a: (lambda t: t.to(torch.bfloat16) if t.is_floating_point() else t)(torch.as_tensor(a)))
    H = W = 224
    C = 96
    K = 5
    return {
        "x": _w((lambda *s: torch.randn(*s, dtype=torch.bfloat16) * 0.05)(1, H, W, C)),
        "w": _w((lambda *s: torch.randn(*s, dtype=torch.bfloat16) * 0.05)(K, K, C, C)),
    }

def reference(x, w):
    B, H, W, C = x.shape
    K = w.shape[0]
    wp = _pad(w, ((0, H - K), (0, W - K), (0, 0), (0, 0)))
    Xf = (lambda x, axes=(-2,-1): torch.fft.rfft2(x.float(), dim=axes))(x, axes=(1, 2))
    Wf = (lambda x, axes=(-2,-1): torch.fft.rfft2(x.float(), dim=axes))(wp, axes=(0, 1))
    Yf = torch.einsum('bhwi,hwio->bhwo', Xf, Wf)
    y = (lambda x, s, axes=(-2,-1): torch.fft.irfft2(x, s=s, dim=axes).to(torch.bfloat16))(Yf, (H, W), axes=(1, 2))
    return y
```

```python
import sys, argparse

KN = "standalone__fft_conv__vision_kernel"
XCH = 23040
WBASE = 3 * XCH
WGRP = 30720
LDS_TOTAL = WBASE + 3 * WGRP

V_LANE = 1
V_XC = [2, 3]
V_XN = [4, 5]
V_WC = [6, 7, 8]
V_WN = [9, 10, 11]
V_WB = [12, 13, 14]
V_L16 = 15
V_QX = 16
V_T0 = 17; V_T1 = 18; V_T2 = 19
V_OB = 20
ACC = 64
XF = 148
WF = 192
NWSLOT = 5

CLASSES = {
    0: [(r, l) for r in range(6) for l in range(3)] + [(6, 0)],
    1: [(0, 1), (0, 2)] + [(r, l) for r in range(1, 6) for l in range(3)] + [(6, 0), (6, 1)],
    2: [(0, 2)] + [(r, l) for r in range(1, 7) for l in range(3)],
}

class Asm:
    def __init__(self): self.lines = []
    def __call__(self, s): self.lines.append("    " + s)
    def label(self, s): self.lines.append(s + ":")
    def c(self, s): self.lines.append("    ; " + s)
    def text(self): return "\n".join(self.lines) + "\n"

def acc(r, l): b = ACC + (r * 3 + l) * 4; return f"v[{b}:{b+3}]"
def xf(rho): b = XF + rho * 4; return f"v[{b}:{b+3}]"
def wf(slot): b = WF + slot * 4; return f"v[{b}:{b+3}]"
def wf_half(slot, h): b = WF + slot * 4 + 2 * h; return f"v[{b}:{b+1}]"

def mfma_order(units):
    U = set(units)
    seq = []
    for k in range(5):
        if k == 0: blocks = [range(0, 4), range(4, 7)]
        elif k == 4: blocks = [range(0, 3), range(3, 7)]
        else: blocks = [range(0, 7)]
        for blk in blocks:
            for l in range(3):
                for r in blk:
                    if (r, l) in U: seq.append((k, r, l))
    return seq

def schedule(units, cover_dist=8, verbose=False):
    seq = mfma_order(units)
    n = len(seq)
    xuse = {}; wuse = {}
    for p, (k, r, l) in enumerate(seq):
        xuse.setdefault(r + k, []).append(p)
        wuse.setdefault(3 * k + l, []).append(p)
    loads = []
    for rho in range(11):
        if rho not in xuse: continue
        first, last = xuse[rho][0], xuse[rho][-1]
        if rho <= 6:
            loads.append(dict(kind='x', idx=rho, nxt=True, earliest=last + 1, deadline=first + n, ni=1))
        else:
            loads.append(dict(kind='x', idx=rho, nxt=False, earliest=max(0, last + 1 - n), deadline=first, ni=1))
    NXTW = [0, 1, 2]
    for f in range(15):
        first = wuse[f][0]
        if f in NXTW:
            prev = f + 10
            loads.append(dict(kind='w', idx=f, nxt=True, earliest=wuse[prev][-1] + 1, deadline=first + n, ni=2))
        else:
            prev = f - 5
            if prev >= 0: e = wuse[prev][-1] + 1
            else: e = max(0, wuse[prev + 15][-1] + 1 - n)
            loads.append(dict(kind='w', idx=f, nxt=False, earliest=e, deadline=first, ni=2))
    gaps = [[] for _ in range(n + 1)]
    busy = [0] * (n + 1)
    def place(ld, e):
        pos = []
        p = e
        for h in range(ld['ni']):
            while p < n and busy[p] >= 1: p += 1
            assert p < n + 1, ld
            busy[p] += 1
            gaps[p].append((ld, h)); pos.append(p)
            p += 1
        ld['pos'] = pos
    cur = sorted([l for l in loads if not l['nxt']], key=lambda l: l['deadline'])
    for ld in cur: place(ld, ld['earliest'])
    lastw = max(l['pos'][-1] for l in cur if l['kind'] == 'w')
    bar_pos = lastw + 6
    busy[bar_pos] += 1
    nx = sorted([l for l in loads if l['nxt']], key=lambda l: l['deadline'])
    for ld in nx:
        e = ld['earliest']
        if ld['kind'] == 'w': e = max(e, bar_pos + 1)
        place(ld, e)
    for ld in loads:
        dist = ld['deadline'] - ld['pos'][-1]
        if verbose: print(f"  {ld['kind']}{ld['idx']}{'n' if ld['nxt'] else 'c'} e={ld['earliest']} pos={ld['pos']} dl={ld['deadline']} dist={dist}", file=sys.stderr)
        assert ld['pos'][-1] <= ld['deadline'] if not ld['nxt'] else ld['pos'][-1] <= n, ld
    order = []
    for p in range(n + 1):
        for (ld, h) in gaps[p]: order.append((p, ld, h))
    m = len(order)
    def opidx(ld, it):
        for j, (p, l2, h) in enumerate(order):
            if l2 is ld and h == ld['ni'] - 1: return it * m + j, it * n + p
    xl = {l['idx']: l for l in loads if l['kind'] == 'x'}
    wl = {l['idx']: l for l in loads if l['kind'] == 'w'}
    body = []
    covered = -1
    IT = 1
    def issued_before(gp):
        cnt = IT * m
        for (p, l2, h) in order:
            if p <= gp: cnt += 1
        return cnt
    def oppos(gidx):
        it, j = divmod(gidx, m)
        return it * n + order[j][0]
    lastw_ld = [l for l in cur if l['kind'] == 'w' and l['pos'][-1] == lastw][0]
    nwait = 0
    for p in range(n + 1):
        if p == bar_pos:
            gi, _ = opidx(lastw_ld, IT)
            cnt = IT * m + sum(1 for (pp, l2, h) in order if pp < p)
            if gi > covered:
                N = cnt - 1 - gi
                body.append(('wait', min(N, 15))); covered = max(covered, cnt - 1 - min(N, 15)); nwait += 1
            body.append(('barrier',))
        for (ld, h) in gaps[p]: body.append(('load', ld['kind'], ld['idx'], ld['nxt'], h))
        if p == n: break
        k, r, l = seq[p]
        need = -1
        for ld in (xl[r + k], wl[3 * k + l]):
            it = IT - 1 if ld['nxt'] else IT
            gi, _ = opidx(ld, it)
            need = max(need, gi)
        if need > covered:
            cnt = issued_before(p)
            tgt = need
            gpos = IT * n + p
            for gi in range(need + 1, cnt):
                if oppos(gi) <= gpos - cover_dist: tgt = gi
            N = cnt - 1 - tgt
            N = min(N, 15)
            body.append(('wait', N)); covered = cnt - 1 - N; nwait += 1
        body.append(('mfma', k, r, l))
    pre = [(ld['kind'], ld['idx'], h) for (p, ld, h) in order if ld['nxt']]
    if verbose: print(f"  n={n} loads={m} waits={nwait} bar_pos={bar_pos}", file=sys.stderr)
    return pre, body

def emit_load(a, kind, idx, nxt, h):
    if kind == 'x':
        reg = (V_XN if nxt else V_XC)[idx & 1]
        a(f"ds_read_b128 {xf(idx)}, v{reg} offset:{idx * 1280}")
    else:
        k, l = divmod(idx, 3)
        reg = (V_WN if nxt else V_WC)[l]
        a(f"ds_read_b64_tr_b16 {wf_half(idx % NWSLOT, h)}, v{reg} offset:{k * 6144 + h * 768}")

def stamp(a, idx, diag, sreg_ws="s[36:37]"):
    if not diag: return
    b = 40 + 4 * idx
    a(f"s_memrealtime s[{b}:{b+1}]")
    a(f"s_memtime s[{b+2}:{b+3}]")

def store_stamps(a, nst, rec_index_sreg, diag):
    if not diag: return
    a("s_waitcnt lgkmcnt(0)")
    a("s_mov_b64 exec, 1")
    a(f"s_lshl_b32 s34, {rec_index_sreg}, 7")
    a("s_add_u32 s36, s36, s34")
    a("s_addc_u32 s37, s37, 0")
    a("v_mov_b32 v30, 0")
    for i in range(nst):
        b = 40 + 4 * i
        for j in range(4):
            a(f"v_mov_b32 v{24+j}, s{b+j}")
        a(f"global_store_dwordx4 v30, v[24:27], s[36:37] offset:{16*i}")
        a("s_nop 1")
    a("s_waitcnt vmcnt(0)")

def gen(diag=False, verbose=False, opts=None):
    opts = opts or {}
    a = Asm()
    hdr = f"""; Direct circular 5x5 convolution (== FFT conv of the reference), bf16 MFMA 16x16x32, fp32 accumulate.
; @launch grid=(256,1,1) block=(512,1,1) lds={LDS_TOTAL}
.amdgcn_target "amdgcn-amd-amdhsa--gfx950"
.text
.globl {KN}
.p2align 8
.type {KN},@function
{KN}:
"""
    stamp(a, 0, diag)
    a("s_cmp_ge_u32 s2, 256")
    a("s_cbranch_scc1 L_exit")
    a("s_load_dwordx4 s[4:7], s[0:1], 0")
    a("s_load_dwordx2 s[8:9], s[0:1], 16")
    if diag: a("s_load_dwordx2 s[36:37], s[0:1], 32")
    a("s_and_b32 s10, s2, 7")
    a("s_lshr_b32 s11, s2, 3")
    a("s_lshl_b32 s10, s10, 5")
    a("s_add_u32 s10, s10, s11")
    a("s_cmp_ge_u32 s10, 252")
    a("s_cbranch_scc1 L_exit")
    a("s_mul_i32 s11, s10, 4682")
    a("s_lshr_b32 s11, s11, 16")
    a("s_mul_i32 s12, s11, 14")
    a("s_sub_u32 s12, s10, s12")
    a("s_lshl_b32 s12, s12, 4")
    a("s_mul_i32 s13, s11, 21846")
    a("s_lshr_b32 s13, s13, 16")
    a("s_mul_i32 s14, s13, 3")
    a("s_sub_u32 s14, s11, s14")
    a("s_mul_i32 s15, s14, 25")
    a("s_lshr_b32 s15, s15, 1")
    a("s_mul_i32 s13, s13, 38")
    a("s_add_u32 s15, s15, s13")
    a("v_readfirstlane_b32 s16, v0")
    a(f"v_and_b32 v{V_LANE}, 63, v0")
    a("s_lshr_b32 s16, s16, 6")
    a("s_cmp_ge_u32 s16, 4")
    a("s_cbranch_scc1 L_loader")

    a.c("compute wave setup")
    a("s_and_b32 s17, s16, 1")
    a("s_lshr_b32 s18, s16, 1")
    a("s_lshl_b32 s19, s14, 1")
    a("s_add_u32 s19, s19, s18")
    a("s_cmp_ge_u32 s19, 3")
    a("s_cselect_b32 s3, 3, 0")
    a("s_sub_u32 s19, s19, s3")
    a("s_cmp_eq_u32 s14, 1")
    a("s_cselect_b32 s3, 7, 6")
    a("s_mul_i32 s18, s18, s3")
    a(f"v_and_b32 v{V_L16}, 15, v{V_LANE}")
    a(f"v_lshrrev_b32 v{V_T0}, 4, v{V_LANE}")
    a(f"v_bfe_u32 v{V_T1}, v{V_LANE}, 2, 2")
    a(f"v_lshl_add_u32 v{V_T1}, v{V_T0}, 3, v{V_T1}")
    a(f"v_mul_u32_u24 v{V_T1}, 192, v{V_T1}")
    a(f"v_and_b32 v{V_T2}, 3, v{V_LANE}")
    a(f"v_lshl_add_u32 v{V_T1}, v{V_T2}, 3, v{V_T1}")
    a(f"v_add_u32 v{V_T1}, {WBASE}, v{V_T1}")
    a(f"v_and_b32 v{V_T2}, 1, v{V_T0}")
    a(f"v_lshlrev_b32 v{V_T2}, 5, v{V_T2}")
    a("s_lshl_b32 s20, s17, 6")
    a("s_add_u32 s21, s20, 32")
    a("s_lshl_b32 s22, s17, 5")
    a("s_add_u32 s22, s22, 128")
    for l in range(3):
        a(f"v_xor_b32 v{V_WB[l]}, s{20+l}, v{V_T2}")
        a(f"v_add_u32 v{V_WB[l]}, v{V_WB[l]}, v{V_T1}")
        a(f"v_mov_b32 v{V_WN[l]}, v{V_WB[l]}")
    a("s_and_b32 s3, s18, 1")
    a("s_lshl_b32 s3, s3, 1")
    a(f"v_xor_b32 v{V_QX}, s3, v{V_T0}")
    a("s_mul_i32 s23, s18, 1280")
    a("s_add_u32 s3, s15, s18")
    a("s_mul_i32 s3, s3, 43008")
    a(f"v_add_u32 v{V_OB}, s12, v{V_L16}")
    a(f"v_mul_u32_u24 v{V_OB}, 192, v{V_OB}")
    a(f"v_lshl_add_u32 v{V_OB}, v{V_T0}, 3, v{V_OB}")
    a(f"v_add_u32 v{V_OB}, s3, v{V_OB}")
    def xaddr(delta_sreg, base_sreg):
        a(f"v_add_u32 v{V_T0}, {delta_sreg}, v{V_L16}")
        a(f"v_lshrrev_b32 v{V_T1}, 1, v{V_T0}")
        a(f"v_and_b32 v{V_T1}, 2, v{V_T1}")
        a(f"v_xor_b32 v{V_T1}, v{V_T1}, v{V_QX}")
        a(f"v_lshlrev_b32 v{V_T1}, 4, v{V_T1}")
        a(f"v_lshl_add_u32 v{V_T1}, v{V_T0}, 6, v{V_T1}")
        a(f"v_add_u32 v{V_XN[0]}, {base_sreg}, v{V_T1}")
        a(f"v_xor_b32 v{V_XN[1]}, 32, v{V_XN[0]}")
    a("s_mov_b32 s24, 4")
    a("s_mov_b32 s25, s23")
    xaddr("s24", "s25")
    a("s_mov_b32 s26, 0")
    a("s_mov_b32 s27, 0")
    for i in range(84): a(f"v_mov_b32 v{ACC+i}, 0")
    a("s_waitcnt lgkmcnt(0)")
    a("s_mov_b32 s28, s8"); a("s_mov_b32 s29, s9"); a("s_mov_b32 s30, 9633792"); a("s_mov_b32 s31, 0x20000")
    stamp(a, 1, diag)
    a("s_barrier")
    stamp(a, 2, diag)
    a("s_cmp_eq_u32 s19, 1"); a("s_cbranch_scc1 L_cls1")
    a("s_cmp_eq_u32 s19, 2"); a("s_cbranch_scc1 L_cls2")
    for cls in range(3):
        pre, body = schedule(CLASSES[cls], verbose=verbose)
        a.label(f"L_cls{cls}")
        for (kind, idx, h) in pre: emit_load(a, kind, idx, True, h)
        a("s_waitcnt lgkmcnt(0)")
        a.label(f"L_loop{cls}")
        a(f"v_mov_b32 v{V_XC[0]}, v{V_XN[0]}")
        a(f"v_mov_b32 v{V_XC[1]}, v{V_XN[1]}")
        for l in range(3): a(f"v_mov_b32 v{V_WC[l]}, v{V_WN[l]}")
        upd = []
        upd.append("s_sub_u32 s24, s24, 1")
        upd.append("s_cmp_lt_i32 s24, 0")
        upd.append("s_cselect_b32 s3, %d, 0" % XCH)
        upd.append("s_add_u32 s25, s25, s3")
        upd.append("s_cselect_b32 s3, 5, 0")
        a("s_sub_u32 s24, s24, 1")
        a("s_cmp_lt_i32 s24, 0")
        a(f"s_cselect_b32 s3, {XCH}, 0")
        a("s_cselect_b32 s33, 5, 0")
        a("s_add_u32 s25, s25, s3")
        a("s_add_u32 s24, s24, s33")
        a(f"s_add_u32 s26, s26, {WGRP}")
        a(f"s_cmp_eq_u32 s26, {3*WGRP}")
        a("s_cselect_b32 s26, 0, s26")
        valu = []
        valu.append(f"v_add_u32 v{V_T0}, s24, v{V_L16}")
        valu.append(f"v_lshrrev_b32 v{V_T1}, 1, v{V_T0}")
        valu.append(f"v_and_b32 v{V_T1}, 2, v{V_T1}")
        valu.append(f"v_xor_b32 v{V_T1}, v{V_T1}, v{V_QX}")
        valu.append(f"v_lshlrev_b32 v{V_T1}, 4, v{V_T1}")
        valu.append(f"v_lshl_add_u32 v{V_T1}, v{V_T0}, 6, v{V_T1}")
        valu.append(f"v_add_u32 v{V_XN[0]}, s25, v{V_T1}")
        valu.append(f"v_xor_b32 v{V_XN[1]}, 32, v{V_XN[0]}")
        for l in range(3): valu.append(f"v_add_u32 v{V_WN[l]}, s26, v{V_WB[l]}")
        firstn = None; cnt = 0
        for it in body:
            if it[0] == 'mfma': cnt += 1
            if it[0] == 'load' and it[3] and firstn is None: firstn = cnt
        assert firstn >= len(valu) // 2 + 1 or True
        vi = 0; cnt = 0
        per = 2 if firstn < len(valu) + 1 else 1
        for it in body:
            if it[0] == 'mfma':
                _, k, r, l = it
                f = 3 * k + l
                a(f"v_mfma_f32_16x16x32_bf16 {acc(r,l)}, {wf(f % NWSLOT)}, {xf(r+k)}, {acc(r,l)}")
                cnt += 1
                for _ in range(per):
                    if vi < len(valu): a(valu[vi]); vi += 1
            elif it[0] == 'load':
                if it[3]: assert vi == len(valu), (cls, "valu not finished before next-load", vi, firstn)
                emit_load(a, it[1], it[2], it[3], it[4])
            elif it[0] == 'wait': a(f"s_waitcnt lgkmcnt({it[1]})")
            elif it[0] == 'barrier': a("s_barrier")
        a("s_add_u32 s27, s27, 1")
        a("s_cmp_lt_u32 s27, 15")
        a(f"s_cbranch_scc1 L_loop{cls}")
        stamp(a, 3, diag)
        a("s_waitcnt lgkmcnt(0)")
        a("s_nop 7"); a("s_nop 7")
        for (r, l) in CLASSES[cls]:
            b = ACC + (r * 3 + l) * 4
            a(f"v_cvt_pk_bf16_f32 v{b}, v{b}, v{b+1}")
            a(f"v_cvt_pk_bf16_f32 v{b+1}, v{b+2}, v{b+3}")
        lastr = None
        for (r, l) in CLASSES[cls]:
            b = ACC + (r * 3 + l) * 4
            if r != lastr:
                a(f"s_mov_b32 s3, {r * 43008}")
                a(f"v_add_u32 v{V_T0}, s3, v{V_OB}")
                lastr = r
            a(f"buffer_store_dwordx2 v[{b}:{b+1}], v{V_T0}, s[28:31], s{20+l} offen")
        if diag:
            stamp(a, 4, diag)
            a("s_waitcnt vmcnt(0)")
            stamp(a, 5, diag)
            a("s_lshl_b32 s3, s2, 3"); a("s_add_u32 s3, s3, s16")
            store_stamps(a, 6, "s3", diag)
        a("s_endpgm")

    a.label("L_loader")
    a("s_sub_u32 s17, s16, 4")
    a("s_mov_b32 exec_lo, -1"); a("s_mov_b32 exec_hi, 0x0fffffff")
    L = V_LANE
    a(f"v_lshrrev_b32 v2, 2, v{L}")
    a(f"v_and_b32 v3, 3, v{L}")
    a("s_mul_i32 s18, s17, 90")
    a("s_add_u32 s19, s15, 220")
    a("s_add_u32 s20, s12, 220")
    for j in range(6):
        a(f"s_add_u32 s3, s18, {15*j}")
        a("v_add_u32 v4, s3, v2")
        a("v_mul_u32_u24 v5, 3277, v4")
        a("v_lshrrev_b32 v5, 16, v5")
        a("v_mul_u32_u24 v6, 20, v5")
        a("v_sub_u32 v6, v4, v6")
        a("v_add_u32 v5, s19, v5")
        a("v_subrev_u32 v7, 224, v5"); a("v_min_u32 v5, v5, v7")
        a("v_subrev_u32 v7, 224, v5"); a("v_min_u32 v5, v5, v7")
        a("v_add_u32 v6, s20, v6")
        a("v_subrev_u32 v7, 224, v6"); a("v_min_u32 v6, v6, v7")
        a("v_mul_u32_u24 v5, 224, v5")
        a("v_add_u32 v5, v5, v6")
        a("v_mul_u32_u24 v5, 192, v5")
        a("v_lshrrev_b32 v7, 1, v4"); a("v_and_b32 v7, 2, v7"); a("v_xor_b32 v7, v7, v3")
        a(f"v_lshl_add_u32 v{32+j}, v7, 4, v5")
    a(f"v_mul_u32_u24 v2, 43, v{L}"); a("v_lshrrev_b32 v2, 9, v2")
    a("v_mul_u32_u24 v3, 12, v2"); a(f"v_sub_u32 v3, v{L}, v3")
    a("s_mul_i32 s18, s17, 40")
    a("s_mov_b32 s21, 92160")
    for j in range(8):
        a(f"s_add_u32 s3, s18, {5*j}")
        a("v_add_u32 v4, s3, v2")
        a("v_lshrrev_b32 v5, 5, v4")
        a("v_and_b32 v6, 31, v4")
        a("v_sub_u32 v5, 4, v5")
        a("v_mul_lo_u32 v5, s21, v5")
        a("v_mul_u32_u24 v7, 192, v6")
        a("v_add_u32 v5, v5, v7")
        a("v_lshrrev_b32 v7, 2, v6"); a("v_and_b32 v7, 2, v7"); a("v_xor_b32 v7, v7, v3")
        a(f"v_lshl_add_u32 v{40+j}, v7, 4, v5")
    a("s_waitcnt lgkmcnt(0)")
    a("s_mov_b32 s20, s4"); a("s_mov_b32 s21, s5"); a("s_mov_b32 s22, 9633792"); a("s_mov_b32 s23, 0x20000")
    a("s_mov_b32 s24, s6"); a("s_mov_b32 s25, s7"); a("s_mov_b32 s26, 460800"); a("s_mov_b32 s27, 0x20000")
    a("s_mul_i32 s28, s17, 5760")
    a("s_mul_i32 s29, s17, 7680")
    a(f"s_add_u32 s29, s29, {WBASE}")
    stamp(a, 1, diag)
    def issue_x(c):
        a(f"s_mov_b32 s3, {64*c}")
        for j in range(6):
            a(f"s_add_u32 m0, s28, {c*XCH + j*960}")
            a("s_nop 0")
            a(f"buffer_load_dwordx4 v{32+j}, s[20:23], s3 offen lds")
    def issue_w(dest_sreg, soff):
        for j in range(8):
            a(f"s_add_u32 m0, {dest_sreg}, {j*960}")
            a("s_nop 0")
            a(f"buffer_load_dwordx4 v{40+j}, s[24:27], {soff} offen lds")
    issue_x(0)
    for g in range(3):
        a(f"s_add_u32 s30, s29, {g*WGRP}")
        a(f"s_mov_b32 s31, {g*18432}")
        issue_w("s30", "s31")
    issue_x(1); issue_x(2)
    a("s_waitcnt vmcnt(28)")
    stamp(a, 2, diag)
    a("s_barrier")
    a("s_mov_b32 s32, 0")
    a("s_mov_b32 s30, s29")
    a(f"s_mov_b32 s31, {3*18432}")
    a("s_mov_b32 s33, 3")
    a(f"s_add_u32 s34, s29, {3*WGRP}")
    a.label("L_ldloop")
    a("s_cmp_lt_u32 s32, 2"); a("s_cbranch_scc1 L_w20")
    a("s_cmp_lt_u32 s32, 13"); a("s_cbranch_scc1 L_w8")
    a("s_waitcnt vmcnt(0)"); a("s_branch L_wd")
    a.label("L_w20"); a("s_waitcnt vmcnt(20)"); a("s_branch L_wd")
    a.label("L_w8"); a("s_waitcnt vmcnt(8)")
    a.label("L_wd")
    a("s_barrier")
    a("s_cmp_lt_u32 s32, 12"); a("s_cbranch_scc0 L_skip")
    issue_w("s30", "s31")
    a(f"s_add_u32 s30, s30, {WGRP}")
    a("s_cmp_eq_u32 s30, s34"); a("s_cselect_b32 s30, s29, s30")
    a("s_add_u32 s31, s31, 18432")
    a("s_add_u32 s33, s33, 1")
    a("s_cmp_eq_u32 s33, 5")
    a(f"s_cselect_b32 s3, {5*18432 - 6144}, 0")
    a("s_cselect_b32 s33, 0, s33")
    a("s_sub_u32 s31, s31, s3")
    a.label("L_skip")
    a("s_add_u32 s32, s32, 1"); a("s_cmp_lt_u32 s32, 15"); a("s_cbranch_scc1 L_ldloop")
    if diag:
        stamp(a, 3, diag); stamp(a, 4, diag); stamp(a, 5, diag)
        a("s_lshl_b32 s3, s2, 3"); a("s_add_u32 s3, s3, s16")
        store_stamps(a, 6, "s3", diag)
    a.label("L_exit")
    a("s_endpgm")
    ftr = f"""
.section .rodata,"a"
.p2align 6
.amdhsa_kernel {KN}
  .amdhsa_next_free_vgpr 256
  .amdhsa_next_free_sgpr 96
  .amdhsa_accum_offset 256
  .amdhsa_group_segment_fixed_size 0
  .amdhsa_kernarg_size 40
  .amdhsa_user_sgpr_count 2
  .amdhsa_user_sgpr_kernarg_segment_ptr 1
  .amdhsa_system_sgpr_workgroup_id_x 1
.end_amdhsa_kernel
"""
    return hdr + a.text() + ftr

if __name__ == "__main__":
    ap = argparse.ArgumentParser()
    ap.add_argument("-o", default="standalone__fft_conv__vision.s")
    ap.add_argument("--diag", action="store_true")
    ap.add_argument("-v", action="store_true")
    args = ap.parse_args()
    open(args.o, "w").write(gen(diag=args.diag, verbose=args.v))
```

```python
import sys, argparse

KN = "standalone__fft_conv__vision_kernel"
XCH = 23040
WBASE = 3 * XCH
WGRP = 30720
LDS_TOTAL = WBASE + 3 * WGRP

V_LANE = 1
V_XA = [2, 3]
V_WA = [6, 7, 8]
V_L16 = 15
V_QX = 16
V_T0 = 17; V_T1 = 18; V_T2 = 19
V_OB = 20
V_OB2 = 21
V_XO = [24, 25]
ACC = 64
XF = 148
WF = 192
NWSLOT = 5

CLASSES = {
    0: [(r, l) for r in range(6) for l in range(3)] + [(6, 0)],
    1: [(0, 1), (0, 2)] + [(r, l) for r in range(1, 6) for l in range(3)] + [(6, 0), (6, 1)],
    2: [(0, 2)] + [(r, l) for r in range(1, 7) for l in range(3)],
}

class Asm:
    def __init__(self): self.lines = []
    def __call__(self, s): self.lines.append("    " + s)
    def label(self, s): self.lines.append(s + ":")
    def c(self, s): self.lines.append("    ; " + s)
    def text(self): return "\n".join(self.lines) + "\n"

def acc(r, l): b = ACC + (r * 3 + l) * 4; return f"v[{b}:{b+3}]"
def xf(rho): b = XF + rho * 4; return f"v[{b}:{b+3}]"
def wf(slot): b = WF + slot * 4; return f"v[{b}:{b+3}]"
def wf_half(slot, h): b = WF + slot * 4 + 2 * h; return f"v[{b}:{b+1}]"

def mfma_order(units):
    U = set(units)
    seq = []
    for k in range(5):
        if k == 0: blocks = [range(0, 4), range(4, 7)]
        elif k == 4: blocks = [range(0, 3), range(3, 7)]
        else: blocks = [range(0, 7)]
        for blk in blocks:
            for l in range(3):
                for r in blk:
                    if (r, l) in U: seq.append((k, r, l))
    return seq

def load_text(kind, idx, h):
    if kind == 'x':
        return f"ds_read_b128 {xf(idx)}, v{V_XA[idx & 1]} offset:{idx * 1280}"
    k, l = divmod(idx, 3)
    return f"ds_read_b64_tr_b16 {wf_half(idx % NWSLOT, h)}, v{V_WA[l]} offset:{k * 6144 + h * 768}"

def schedule(units, opts, verbose=False):
    cover_dist = opts.get('cover', 8)
    seq = mfma_order(units)
    n = len(seq)
    xuse = {}; wuse = {}
    for p, (k, r, l) in enumerate(seq):
        xuse.setdefault(r + k, []).append(p)
        wuse.setdefault(3 * k + l, []).append(p)
    loads = []
    for rho in range(11):
        if rho not in xuse: continue
        first, last = xuse[rho][0], xuse[rho][-1]
        if rho <= 6:
            loads.append(dict(kind='x', idx=rho, nxt=True, earliest=last + 1, deadline=first + n, ni=1))
        else:
            loads.append(dict(kind='x', idx=rho, nxt=False, earliest=max(0, last + 1 - n), deadline=first, ni=1))
    NXTW = [0, 1, 2]
    for f in range(15):
        first = wuse[f][0]
        if f in NXTW:
            loads.append(dict(kind='w', idx=f, nxt=True, earliest=wuse[f + 10][-1] + 1, deadline=first + n, ni=2))
        else:
            prev = f - 5
            e = wuse[prev][-1] + 1 if prev >= 0 else max(0, wuse[prev + 15][-1] + 1 - n)
            loads.append(dict(kind='w', idx=f, nxt=False, earliest=e, deadline=first, ni=2))
    gaps = [[] for _ in range(n + 1)]
    busy = [0] * (n + 1)
    def place_load(ld, e):
        pos = []; p = e
        for h in range(ld['ni']):
            while p < n and busy[p] >= 1: p += 1
            busy[p] += 1
            gaps[p].append(('load', ld, h)); pos.append(p)
            p += 1
        ld['pos'] = pos
    def place_ops(ops, e, limit):
        p = e; last = e
        for i, t in enumerate(ops):
            remaining = len(ops) - i
            q = p
            while q < limit and busy[q] >= 1 and (limit - q) > remaining: q += 1
            if q >= limit: q = limit - 1
            busy[q] += 1
            gaps[q].append(('op', t)); last = q
            p = q + 1 if (limit - (q + 1)) >= remaining - 1 else q
        return last
    cur = sorted([l for l in loads if not l['nxt']], key=lambda l: l['deadline'])
    for ld in cur: place_load(ld, ld['earliest'])
    lastw = max(l['pos'][-1] for l in cur if l['kind'] == 'w')
    lastx = max(l['pos'][-1] for l in cur if l['kind'] == 'x')
    bar_pos = lastw + opts.get('bargap', 6)
    busy[bar_pos] += 1
    gaps[bar_pos].append(('bar',))
    wops_s = [f"s_add_u32 s26, s26, {WGRP}", f"s_cmp_eq_u32 s26, {3*WGRP}", f"s_cselect_b32 s33, {-3*WGRP & 0xffffffff}, 0",
              "s_cselect_b32 s26, 0, s26", f"s_add_u32 s33, s33, {WGRP}"]
    wops_v = [f"v_add_u32 v{V_WA[l]}, s33, v{V_WA[l]}" for l in range(3)]
    xops_s = ["s_sub_u32 s24, s24, 1", "s_cmp_lt_i32 s24, 0", f"s_cselect_b32 s3, {XCH}, 0", "s_cselect_b32 s34, 5, 0",
              "s_add_u32 s25, s25, s3", "s_add_u32 s24, s24, s34"]
    xops_v = [f"v_add_u32 v{V_T0}, s24, v{V_L16}", f"v_lshrrev_b32 v{V_T1}, 1, v{V_T0}", f"v_and_b32 v{V_T1}, 2, v{V_T1}",
              f"v_xor_b32 v{V_T1}, v{V_T1}, v{V_QX}", f"v_lshlrev_b32 v{V_T1}, 4, v{V_T1}",
              f"v_lshl_add_u32 v{V_T1}, v{V_T0}, 6, v{V_T1}", f"v_add_u32 v{V_XA[0]}, s25, v{V_T1}", f"v_xor_b32 v{V_XA[1]}, 32, v{V_XA[0]}"]
    nx = sorted([l for l in loads if l['nxt']], key=lambda l: l['deadline'])
    xs_end = place_ops(xops_s, lastx + 1, 40)
    xv_end = place_ops(xops_v, xs_end + 1, 52)
    ws_end = place_ops(wops_s, max(xv_end + 1, lastw - 12), lastw + 1 + 8)
    wv_end = place_ops(wops_v, max(ws_end + 1, lastw + 1), bar_pos + 4)
    for ld in nx:
        e = ld['earliest']
        if ld['kind'] == 'w': e = max(e, bar_pos + 1, wv_end + 1)
        else: e = max(e, xv_end + 1)
        place_load(ld, e)
    for ld in loads:
        dist = ld['deadline'] - ld['pos'][-1]
        if verbose: print(f"  {ld['kind']}{ld['idx']}{'n' if ld['nxt'] else 'c'} e={ld['earliest']} pos={ld['pos']} dl={ld['deadline']} dist={dist}", file=sys.stderr)
        assert dist >= 4, ld
    order = [(p, it[1], it[2]) for p in range(n + 1) for it in gaps[p] if it[0] == 'load']
    m = len(order)
    def opidx(ld, it):
        for j, (p, l2, h) in enumerate(order):
            if l2 is ld and h == ld['ni'] - 1: return it * m + j
    xl = {l['idx']: l for l in loads if l['kind'] == 'x'}
    wl = {l['idx']: l for l in loads if l['kind'] == 'w'}
    body = []
    covered = -1
    IT = 1
    def oppos(gidx):
        it, j = divmod(gidx, m)
        return it * n + order[j][0]
    lastw_ld = [l for l in cur if l['kind'] == 'w' and l['pos'][-1] == lastw][0]
    nwait = 0
    issued = IT * m
    for p in range(n + 1):
        for it in gaps[p]:
            if it[0] == 'bar':
                gi = opidx(lastw_ld, IT)
                if gi > covered:
                    N = min(issued - 1 - gi, 15)
                    body.append(('wait', N)); covered = issued - 1 - N; nwait += 1
                body.append(('barrier',))
            elif it[0] == 'load':
                body.append(('text', load_text(it[1]['kind'], it[1]['idx'], it[2]))); issued += 1
            else:
                body.append(('text', it[1]))
        if p == n: break
        k, r, l = seq[p]
        need = -1
        for ld in (xl[r + k], wl[3 * k + l]):
            need = max(need, opidx(ld, IT - 1 if ld['nxt'] else IT))
        if need > covered:
            tgt = need
            gpos = IT * n + p
            for gi in range(need + 1, issued):
                if oppos(gi) <= gpos - cover_dist: tgt = gi
            N = min(issued - 1 - tgt, 15)
            body.append(('wait', N)); covered = issued - 1 - N; nwait += 1
        body.append(('mfma', k, r, l))
    pre = [load_text(ld['kind'], ld['idx'], h) for (p, ld, h) in order if ld['nxt']]
    if verbose:
        print(f"  n={n} loads={m} waits={nwait} bar_pos={bar_pos} busy={busy}", file=sys.stderr)
    return pre, body

def stamp(a, idx, diag):
    if not diag or idx is None: return
    b = 40 + 4 * idx
    a(f"s_memrealtime s[{b}:{b+1}]")
    a(f"s_memtime s[{b+2}:{b+3}]")

_spin_id = [0]
def spin(a, ticks):
    if not ticks: return
    i = _spin_id[0]; _spin_id[0] += 1
    a("s_waitcnt lgkmcnt(0)")
    a.label(f"L_spin{i}")
    a("s_memrealtime s[92:93]")
    a("s_waitcnt lgkmcnt(0)")
    a("s_sub_u32 s94, s92, s90")
    a(f"s_cmp_lt_u32 s94, {ticks}")
    a(f"s_cbranch_scc1 L_spin{i}")

def store_stamps(a, nst, diag):
    if not diag: return
    a("s_waitcnt lgkmcnt(0)")
    a("s_lshl_b32 s3, s2, 3"); a("s_add_u32 s3, s3, s16")
    a("s_mov_b64 exec, 1")
    a("s_lshl_b32 s34, s3, 7")
    a("s_add_u32 s36, s36, s34")
    a("s_addc_u32 s37, s37, 0")
    a("v_mov_b32 v30, 0")
    for i in range(nst):
        b = 40 + 4 * i
        for j in range(4):
            a(f"v_mov_b32 v{32+j}, s{b+j}")
        a(f"global_store_dwordx4 v30, v[32:35], s[36:37] offset:{16*i}")
        a("s_nop 1")
    a("s_waitcnt vmcnt(0)")


V_SR = [40, 41, 42]
V_SL = [43, 44, 45]
V_SG = 46
def store_setup(a):
    a(f"v_lshlrev_b32 v{V_SG}, 4, v{V_LANE}")
    for j in range(3):
        a(f"v_add_u32 v47, {64*j}, v{V_LANE}")
        a("v_mul_u32_u24 v48, 5462, v47"); a("v_lshrrev_b32 v48, 16, v48")
        a("v_mul_u32_u24 v49, 12, v48"); a("v_sub_u32 v49, v47, v49")
        a(f"v_lshrrev_b32 v{V_SL[j]}, 2, v49")
        a("v_bfe_u32 v50, v48, 1, 2"); a("v_xor_b32 v50, v50, v49"); a("v_and_b32 v50, 3, v50")
        a("v_and_b32 v49, 12, v49"); a("v_or_b32 v49, v49, v50")
        a("v_mul_u32_u24 v48, 192, v48")
        a(f"v_lshl_add_u32 v{V_SR[j]}, v49, 4, v48")
    a("s_mov_b32 s76, s8"); a("s_mov_b32 s77, s9"); a("s_mov_b32 s78, 9633792"); a("s_mov_b32 s79, 0x20000")

def store_row(a, row_sreg, stflav, tag):
    a(f"s_add_u32 s80, s15, {row_sreg}")
    a(f"s_cmp_ge_u32 s80, 224"); a(f"s_cbranch_scc1 L_rskip{tag}")
    a("s_mul_i32 s80, s80, 43008")
    a("s_mul_i32 s3, s12, 192"); a("s_add_u32 s80, s80, s3")
    a(f"s_mul_i32 s81, {row_sreg}, 3072")
    for j in range(3): a(f"v_add_u32 v{47+j}, s81, v{V_SR[j]}")
    for j in range(3): a(f"ds_read_b128 v[{52+4*j}:{55+4*j}], v{47+j}")
    a("s_mov_b32 s82, 0"); a("s_mov_b32 s83, 2")
    a(f"s_cmp_eq_u32 {row_sreg}, 0"); a("s_cselect_b32 s82, s84, 0")
    a(f"s_cmp_eq_u32 {row_sreg}, s85"); a("s_cselect_b32 s83, s86, 2")
    for j in range(3):
        a(f"v_cmp_le_u32 vcc, s82, v{V_SL[j]}")
        a(f"v_cmp_ge_u32 s[88:89], s83, v{V_SL[j]}")
        a("s_and_b64 exec, vcc, s[88:89]")
        a(f"s_waitcnt lgkmcnt({2-j})")
        a(f"buffer_store_dwordx4 v[{52+4*j}:{55+4*j}], v{V_SG}, s[76:79], s80 offen offset:{1024*j}{stflav}")
        a("s_mov_b64 exec, -1")
    a.label(f"L_rskip{tag}")

def row_consts(a):
    a("s_mul_i32 s84, s14, 2"); a("s_cmp_eq_u32 s14, 2"); a("s_cselect_b32 s84, 1, s84")
    a("s_cmp_eq_u32 s14, 1"); a("s_cselect_b32 s85, 13, 12"); a("s_cselect_b32 s86, 0, 1")
    a("s_cmp_eq_u32 s14, 2"); a("s_cselect_b32 s85, 99, s85")

def emit_store_rows(a, opts, stflav, mode):
    row_consts(a)
    a("s_mov_b32 s87, s16")
    store_row(a, "s87", stflav, "a")
    a("s_add_u32 s87, s16, 8")
    a("s_cmp_eq_u32 s14, 1"); a("s_cselect_b32 s3, 14, 13")
    a("s_cmp_ge_u32 s87, s3"); a("s_cbranch_scc1 L_rdone")
    store_row(a, "s87", stflav, "b")
    a.label("L_rdone")

def x_offsets(a, n0_sreg, count, dst, tmp):
    t = tmp
    a(f"v_lshrrev_b32 v{t}, 2, v{V_LANE}")
    a(f"v_and_b32 v{t+1}, 3, v{V_LANE}")
    a(f"s_mul_i32 s3, {n0_sreg}, 15")
    a(f"v_add_u32 v{t}, s3, v{t}")
    a("s_add_u32 s34, s15, 220")
    a("s_add_u32 s35, s12, 220")
    for j in range(count):
        if j: a(f"v_add_u32 v{t}, 15, v{t}")
        a(f"v_mul_u32_u24 v{t+2}, 3277, v{t}")
        a(f"v_lshrrev_b32 v{t+2}, 16, v{t+2}")
        a(f"v_mul_u32_u24 v{t+3}, 20, v{t+2}")
        a(f"v_sub_u32 v{t+3}, v{t}, v{t+3}")
        a(f"v_add_u32 v{t+2}, s34, v{t+2}")
        a(f"v_subrev_u32 v{t+4}, 224, v{t+2}"); a(f"v_min_u32 v{t+2}, v{t+2}, v{t+4}")
        a(f"v_subrev_u32 v{t+4}, 224, v{t+2}"); a(f"v_min_u32 v{t+2}, v{t+2}, v{t+4}")
        a(f"v_add_u32 v{t+3}, s35, v{t+3}")
        a(f"v_subrev_u32 v{t+4}, 224, v{t+3}"); a(f"v_min_u32 v{t+3}, v{t+3}, v{t+4}")
        a(f"v_mul_u32_u24 v{t+2}, 224, v{t+2}")
        a(f"v_add_u32 v{t+2}, v{t+2}, v{t+3}")
        a(f"v_mul_u32_u24 v{t+2}, 192, v{t+2}")
        a(f"v_lshrrev_b32 v{t+4}, 1, v{t}"); a(f"v_and_b32 v{t+4}, 2, v{t+4}"); a(f"v_xor_b32 v{t+4}, v{t+4}, v{t+1}")
        a(f"v_lshl_add_u32 v{dst+j}, v{t+4}, 4, v{t+2}")

def gen(diag=False, verbose=False, opts=None):
    opts = opts or {}
    if opts.get('pfine'):
        SM = dict(pre_ka=1, post_ka=2, x0_issued=3, c_setup=None, c_x0landed=4, c_binit=5, l_w0issued=4, l_prebar=5)
    else:
        SM = dict(c_setup=1, c_binit=2, c_loopend=3, c_stissue=4, c_end=5, l_w0issued=1, l_prebar=2, l_setup2=3)
    a = Asm()
    hdr = f"""; Direct circular 5x5 convolution (== FFT conv of the reference), bf16 MFMA 16x16x32, fp32 accumulate.
; @launch grid=(256,1,1) block=(512,1,1) lds={LDS_TOTAL}
.amdgcn_target "amdgcn-amd-amdhsa--gfx950"
.text
.globl {KN}
.p2align 8
.type {KN},@function
{KN}:
"""
    stflav = opts.get('st', '')
    stflav = (" " + stflav.replace("+", " ")) if stflav else ""
    stamp(a, 0, diag)
    if opts.get('spin_end') or opts.get('spin_init'):
        a("s_memrealtime s[90:91]")
    a("s_cmp_ge_u32 s2, 256")
    a("s_cbranch_scc1 L_exit")
    a("s_load_dwordx4 s[4:7], s[0:1], 0")
    a("s_load_dwordx2 s[8:9], s[0:1], 16")
    if diag: a("s_load_dwordx2 s[36:37], s[0:1], 32")
    if opts.get('codepf'):
        a("s_getpc_b64 s[72:73]")
        a("s_lshr_b32 s3, s2, 3"); a(f"s_cmp_ge_u32 s3, {opts.get('codepf')}"); a("s_cbranch_scc1 L_nopf")
        a("v_cmp_gt_u32 vcc, 64, v0")
        a("s_and_saveexec_b64 s[74:75], vcc"); a("s_cbranch_execz L_nopf2")
        a("v_lshlrev_b32 v50, 7, v0")
        a("global_load_dword v51, v50, s[72:73]")
        a.label("L_nopf2")
        a("s_mov_b64 exec, s[74:75]")
        a.label("L_nopf")
    a("s_and_b32 s10, s2, 7")
    a("s_lshr_b32 s11, s2, 3")
    a("s_lshl_b32 s10, s10, 5")
    a("s_add_u32 s10, s10, s11")
    a("s_cmp_ge_u32 s10, 252")
    a("s_cbranch_scc1 L_exit")
    a("s_mul_i32 s11, s10, 4682")
    a("s_lshr_b32 s11, s11, 16")
    a("s_mul_i32 s12, s11, 14")
    a("s_sub_u32 s12, s10, s12")
    a("s_lshl_b32 s12, s12, 4")
    a("s_mul_i32 s13, s11, 21846")
    a("s_lshr_b32 s13, s13, 16")
    a("s_mul_i32 s14, s13, 3")
    a("s_sub_u32 s14, s11, s14")
    a("s_mul_i32 s15, s14, 25")
    a("s_lshr_b32 s15, s15, 1")
    a("s_mul_i32 s13, s13, 38")
    a("s_add_u32 s15, s15, s13")
    a("v_readfirstlane_b32 s16, v0")
    a(f"v_and_b32 v{V_LANE}, 63, v0")
    a("s_lshr_b32 s16, s16, 6")
    a(f"v_lshrrev_b32 v27, 2, v{V_LANE}")
    a(f"v_and_b32 v28, 3, v{V_LANE}")
    a("s_and_b32 s17, s16, 1")
    a("s_lshl_b32 s17, s17, 1")
    a("v_xor_b32 v28, s17, v28")
    a("s_add_u32 s35, s12, 220")
    for h in range(2):
        if h: a("v_add_u32 v27, 10, v27")
        a(f"v_lshrrev_b32 v29, 1, v27"); a("v_and_b32 v29, 2, v29"); a("v_xor_b32 v29, v29, v28")
        a("v_add_u32 v30, s35, v27")
        a("v_subrev_u32 v31, 224, v30"); a("v_min_u32 v30, v30, v31")
        a("v_mul_u32_u24 v30, 192, v30")
        a(f"v_lshl_add_u32 v{V_XO[h]}, v29, 4, v30")
    a("s_add_u32 s34, s15, 220")
    a("s_mov_b32 exec_lo, -1"); a("s_mov_b32 exec_hi, 0xff")
    stamp(a, SM.get('pre_ka'), diag)
    a("s_waitcnt lgkmcnt(0)")
    stamp(a, SM.get('post_ka'), diag)
    a("s_mov_b32 s20, s4"); a("s_mov_b32 s21, s5"); a("s_mov_b32 s22, 9633792"); a("s_mov_b32 s23, 0x20000")
    def x_row(rho_sreg, chunk, lab=None):
        a(f"s_add_u32 s3, s34, {rho_sreg}")
        a("s_sub_u32 s38, s3, 224"); a("s_min_u32 s3, s3, s38")
        a("s_sub_u32 s38, s3, 224"); a("s_min_u32 s3, s3, s38")
        a("s_mul_i32 s3, s3, 43008")
        if chunk: a(f"s_add_u32 s3, s3, {64*chunk}")
        a(f"s_mul_i32 s38, {rho_sreg}, 1280")
        a(f"s_add_u32 m0, s38, {chunk*XCH}")
        a("s_nop 0")
        a(f"buffer_load_dwordx4 v{V_XO[0]}, s[20:23], s3 offen lds")
        a(f"s_add_u32 m0, s38, {chunk*XCH + 640}")
        a("s_nop 0")
        a(f"buffer_load_dwordx4 v{V_XO[1]}, s[20:23], s3 offen lds")
    order = opts.get('order', 'O')
    def x0_rows(tag):
        a("s_mov_b32 s39, s16")
        x_row("s39", 0)
        a("s_add_u32 s39, s16, 8")
        x_row("s39", 0)
        a(f"s_cmp_ge_u32 s16, 2"); a(f"s_cbranch_scc1 L_x0done{tag}")
        a("s_add_u32 s39, s16, 16")
        x_row("s39", 0)
        a.label(f"L_x0done{tag}")
    if order != 'O':
        a("s_cmp_ge_u32 s16, 4")
        a("s_cbranch_scc1 L_loader")
    if order == 'C':
        for m in range(3):
            a(f"s_add_u32 s39, s16, {4*m}")
            x_row("s39", 0)
    else:
        x0_rows("")
    stamp(a, SM.get('x0_issued'), diag)
    a("s_cmp_ge_u32 s16, 4")
    a("s_cbranch_scc1 L_loader")

    a.c("compute wave setup")
    a("s_mov_b64 exec, -1")
    if opts.get('prio'): a("s_setprio 3")
    a("s_and_b32 s17, s16, 1")
    a("s_lshr_b32 s18, s16, 1")
    a("s_lshl_b32 s19, s14, 1")
    a("s_add_u32 s19, s19, s18")
    a("s_cmp_ge_u32 s19, 3")
    a("s_cselect_b32 s3, 3, 0")
    a("s_sub_u32 s19, s19, s3")
    a("s_cmp_eq_u32 s14, 1")
    a("s_cselect_b32 s3, 7, 6")
    a("s_mul_i32 s18, s18, s3")
    a(f"v_and_b32 v{V_L16}, 15, v{V_LANE}")
    a(f"v_lshrrev_b32 v{V_T0}, 4, v{V_LANE}")
    a(f"v_bfe_u32 v{V_T1}, v{V_LANE}, 2, 2")
    a(f"v_lshl_add_u32 v{V_T1}, v{V_T0}, 3, v{V_T1}")
    a(f"v_mul_u32_u24 v{V_T1}, 192, v{V_T1}")
    a(f"v_and_b32 v{V_T2}, 3, v{V_LANE}")
    a(f"v_lshl_add_u32 v{V_T1}, v{V_T2}, 3, v{V_T1}")
    a(f"v_add_u32 v{V_T1}, {WBASE}, v{V_T1}")
    a(f"v_and_b32 v{V_T2}, 1, v{V_T0}")
    a(f"v_lshlrev_b32 v{V_T2}, 5, v{V_T2}")
    a("s_lshl_b32 s20, s17, 5")
    a("s_add_u32 s21, s20, 64")
    a("s_add_u32 s22, s20, 128")
    for l in range(3):
        a(f"v_xor_b32 v{V_WA[l]}, s{20+l}, v{V_T2}")
        a(f"v_add_u32 v{V_WA[l]}, v{V_WA[l]}, v{V_T1}")
    a("s_and_b32 s3, s18, 1")
    a("s_lshl_b32 s3, s3, 1")
    a(f"v_xor_b32 v{V_QX}, s3, v{V_T0}")
    a("s_mul_i32 s25, s18, 1280")
    a(f"v_lshrrev_b32 v{V_T1}, 1, v{V_T0}")
    a("s_lshl_b32 s3, s17, 1")
    a(f"v_add_u32 v{V_T1}, s3, v{V_T1}")
    a(f"v_bfe_u32 v{V_T2}, v{V_L16}, 1, 2")
    a(f"v_xor_b32 v{V_T1}, v{V_T1}, v{V_T2}")
    a(f"v_mul_u32_u24 v{V_OB}, 192, v{V_L16}")
    a(f"v_lshl_add_u32 v{V_OB}, v{V_T1}, 4, v{V_OB}")
    a(f"v_and_b32 v{V_T2}, 1, v{V_T0}")
    a(f"v_lshl_add_u32 v{V_OB}, v{V_T2}, 3, v{V_OB}")
    a("s_mul_i32 s3, s18, 3072")
    a(f"v_add_u32 v{V_OB}, s3, v{V_OB}")
    a("s_mov_b32 s24, 4")
    a(f"v_add_u32 v{V_T0}, s24, v{V_L16}")
    a(f"v_lshrrev_b32 v{V_T1}, 1, v{V_T0}")
    a(f"v_and_b32 v{V_T1}, 2, v{V_T1}")
    a(f"v_xor_b32 v{V_T1}, v{V_T1}, v{V_QX}")
    a(f"v_lshlrev_b32 v{V_T1}, 4, v{V_T1}")
    a(f"v_lshl_add_u32 v{V_T1}, v{V_T0}, 6, v{V_T1}")
    a(f"v_add_u32 v{V_XA[0]}, s25, v{V_T1}")
    a(f"v_xor_b32 v{V_XA[1]}, 32, v{V_XA[0]}")
    store_setup(a)
    a("s_mov_b32 s26, 0")
    a("s_mov_b32 s27, 0")
    for i in range(84): a(f"v_mov_b32 v{ACC+i}, 0")
    a("s_mov_b32 s28, s8"); a("s_mov_b32 s29, s9"); a("s_mov_b32 s30, 9633792"); a("s_mov_b32 s31, 0x20000")
    stamp(a, SM.get('c_setup'), diag)
    spin(a, opts.get('spin_init'))
    a("s_waitcnt vmcnt(0)")
    stamp(a, SM.get('c_x0landed'), diag)
    a("s_barrier")
    stamp(a, SM.get('c_binit'), diag)
    a("s_cmp_eq_u32 s19, 1"); a("s_cbranch_scc1 L_cls1")
    a("s_cmp_eq_u32 s19, 2"); a("s_cbranch_scc1 L_cls2")
    for cls in range(3):
        pre, body = schedule(CLASSES[cls], opts, verbose=verbose)
        a.label(f"L_cls{cls}")
        for t in pre: a(t)
        a("s_waitcnt lgkmcnt(0)")
        if opts.get('align'): a.lines.append(f"    .p2align {opts['align']}")
        a.label(f"L_loop{cls}")
        if opts.get('gstamp'):
            a("s_mov_b32 m0, s27")
            a("v_writelane_b32 v60, s70, m0")
            a("s_memtime s[70:71]")
        nm = sum(1 for it in body if it[0] == 'mfma'); cnt = 0
        for it in body:
            if it[0] == 'mfma':
                _, k, r, l = it
                f = 3 * k + l
                a(f"v_mfma_f32_16x16x32_bf16 {acc(r,l)}, {wf(f % NWSLOT)}, {xf(r+k)}, {acc(r,l)}")
                cnt += 1
                if cnt == nm - 1: a("s_add_u32 s27, s27, 1")
            elif it[0] == 'text': a(it[1])
            elif it[0] == 'wait': a(f"s_waitcnt lgkmcnt({it[1]})")
            elif it[0] == 'barrier':
                if not opts.get('nobar'): a("s_barrier")
        a("s_cmp_lt_u32 s27, 15")
        a(f"s_cbranch_scc1 L_loop{cls}")
        if opts.get('gstamp'):
            a("s_waitcnt lgkmcnt(0)")
            a("v_writelane_b32 v60, s70, 15")
            a("s_memtime s[70:71]"); a("s_waitcnt lgkmcnt(0)"); a("v_writelane_b32 v60, s70, 16")
        stamp(a, SM.get('c_loopend'), diag)
        a("s_waitcnt lgkmcnt(0)")
        a("s_nop 7")
        for (r, l) in CLASSES[cls]:
            b = ACC + (r * 3 + l) * 4
            a(f"v_cvt_pk_bf16_f32 v{b}, v{b}, v{b+1}")
            a(f"v_cvt_pk_bf16_f32 v{b+1}, v{b+2}, v{b+3}")
            a(f"ds_write_b64 v{V_OB}, v[{b}:{b+1}] offset:{r*3072 + l*64}")
        a("s_waitcnt lgkmcnt(0)")
        a("s_barrier")
        a("s_branch L_store")

    a.label("L_store")
    stamp(a, SM.get('c_stissue0'), diag)
    emit_store_rows(a, opts, stflav, 'all')
    if diag:
        stamp(a, SM.get('c_stissue'), diag)
        a("s_waitcnt vmcnt(0)")
        stamp(a, SM.get('c_end'), diag)
        store_stamps(a, 6, diag)
    if opts.get('spin_end'):
        a("s_waitcnt vmcnt(0)")
        spin(a, opts.get('spin_end'))
    a("s_endpgm")

    a.label("L_loader")
    if opts.get('lprio', 1): a("s_setprio 3")
    a("s_sub_u32 s17, s16, 4")
    a("s_mov_b32 exec_hi, 0xffff")
    L = V_LANE
    a(f"v_mul_u32_u24 v2, 43, v{L}"); a("v_lshrrev_b32 v2, 9, v2")
    a("v_mul_u32_u24 v3, 12, v2"); a(f"v_sub_u32 v3, v{L}, v3")
    a("s_and_b32 s18, s17, 1"); a("s_lshl_b32 s18, s18, 1")
    a("v_xor_b32 v3, s18, v3")
    a("s_lshl_b32 s18, s17, 3")
    a("v_add_u32 v2, s18, v2")
    a("v_mul_u32_u24 v2, 192, v2")
    a("v_lshl_add_u32 v40, v3, 4, v2")
    a("s_mov_b32 s24, s6"); a("s_mov_b32 s25, s7"); a("s_mov_b32 s26, 460800"); a("s_mov_b32 s27, 0x20000")
    a("s_mul_i32 s29, s17, 1536")
    a(f"s_add_u32 s29, s29, {WBASE}")
    def issue_w(dest_sreg, soff_sreg):
        for k in range(5):
            a(f"s_add_u32 s3, {soff_sreg}, {(4-k)*92160}")
            a(f"s_add_u32 m0, {dest_sreg}, {k*6144}")
            a("s_nop 0")
            a(f"buffer_load_dwordx4 v40, s[24:27], s3 offen lds")
            a(f"buffer_load_dwordx4 v40, s[24:27], s3 offen offset:768 lds")
    def issue_x(c):
        a("s_mov_b32 exec_hi, 0xff")
        for m in range(5):
            if m == 4:
                a("s_cmp_ge_u32 s17, 2"); a(f"s_cbranch_scc1 L_xskip{c}")
            a(f"s_add_u32 s39, s17, {4*m}")
            x_row("s39", c)
        a.label(f"L_xskip{c}")
        a("s_mov_b32 exec_hi, 0xffff")
    if order == 'C':
        def w_tap(k):
            a(f"s_mov_b32 s3, {(4-k)*92160}")
            a(f"s_add_u32 m0, s29, {k*6144}")
            a("s_nop 0")
            a(f"buffer_load_dwordx4 v40, s[24:27], s3 offen lds")
            a(f"buffer_load_dwordx4 v40, s[24:27], s3 offen offset:768 lds")
        w_tap(0)
        a("s_cmp_ge_u32 s17, 2"); a("s_cbranch_scc1 L_c1")
        a("s_mov_b32 exec_hi, 0xff")
        a("s_add_u32 s39, s17, 12"); x_row("s39", 0)
        a("s_mov_b32 exec_hi, 0xffff")
        a.label("L_c1")
        for k in range(1, 5): w_tap(k)
        a("s_mov_b32 exec_hi, 0xff")
        a("s_add_u32 s39, s17, 14"); x_row("s39", 0)
        a("s_mov_b32 exec_hi, 0xffff")
    else:
        a("s_mov_b32 s31, 0"); issue_w("s29", "s31")
        if order != 'O':
            a("s_mov_b32 exec_hi, 0xff")
            x0_rows("L")
            a("s_mov_b32 exec_hi, 0xffff")
    stamp(a, SM.get('l_w0issued'), diag)
    if order not in 'BC':
        a(f"s_add_u32 s30, s29, {WGRP}"); a(f"s_mov_b32 s31, 18432"); issue_w("s30", "s31")
        a("s_waitcnt vmcnt(10)")
    else:
        a("s_waitcnt vmcnt(0)")
    stamp(a, SM.get('l_prebar'), diag)
    a("s_barrier")
    if order in 'BC':
        a(f"s_add_u32 s30, s29, {WGRP}"); a(f"s_mov_b32 s31, 18432"); issue_w("s30", "s31")
    if opts.get('lprio', 1): a(f"s_setprio {opts.get('lprio2', 0)}")
    a(f"s_add_u32 s30, s29, {2*WGRP}"); a(f"s_mov_b32 s31, {2*18432}"); issue_w("s30", "s31")
    stamp(a, SM.get('l_setup2'), diag)
    a("s_mov_b32 s32, 0")
    a("s_mov_b32 s30, s29")
    a(f"s_mov_b32 s31, {3*18432}")
    a("s_mov_b32 s33, 3")
    a(f"s_add_u32 s35, s29, {3*WGRP}")
    a.label("L_ldloop")
    a("s_cmp_eq_u32 s32, 1"); a("s_cbranch_scc1 L_w18")
    a("s_cmp_eq_u32 s32, 3"); a("s_cbranch_scc1 L_w18")
    a("s_cmp_eq_u32 s32, 2"); a("s_cbranch_scc1 L_w26")
    a("s_cmp_lt_u32 s32, 13"); a("s_cbranch_scc1 L_w10")
    a("s_waitcnt vmcnt(0)"); a("s_branch L_wd")
    a.label("L_w18"); a("s_waitcnt vmcnt(18)"); a("s_branch L_wd")
    a.label("L_w26"); a("s_waitcnt vmcnt(26)"); a("s_branch L_wd")
    a.label("L_w10"); a("s_waitcnt vmcnt(10)")
    a.label("L_wd")
    if not opts.get('nobar'): a("s_barrier")
    a("s_cmp_lt_u32 s32, 12"); a("s_cbranch_scc0 L_skip")
    if not opts.get('nodma'): issue_w("s30", "s31")
    a(f"s_add_u32 s30, s30, {WGRP}")
    a("s_cmp_eq_u32 s30, s35"); a("s_cselect_b32 s30, s29, s30")
    a("s_add_u32 s31, s31, 18432")
    a("s_add_u32 s33, s33, 1")
    a("s_cmp_eq_u32 s33, 5")
    a(f"s_cselect_b32 s3, {5*18432 - 6144}, 0")
    a("s_cselect_b32 s33, 0, s33")
    a("s_sub_u32 s31, s31, s3")
    a("s_cmp_eq_u32 s32, 0"); a("s_cbranch_scc0 L_nx1")
    issue_x(1)
    a.label("L_nx1")
    a("s_cmp_eq_u32 s32, 1"); a("s_cbranch_scc0 L_skip")
    issue_x(2)
    a.label("L_skip")
    a("s_add_u32 s32, s32, 1"); a("s_cmp_lt_u32 s32, 15"); a("s_cbranch_scc1 L_ldloop")
    a("s_mov_b64 exec, -1")
    store_setup(a)
    a("s_barrier")
    a("s_branch L_store")
    a.label("L_exit")
    a("s_endpgm")
    ftr = f"""
.section .rodata,"a"
.p2align 6
.amdhsa_kernel {KN}
  .amdhsa_next_free_vgpr 256
  .amdhsa_next_free_sgpr 96
  .amdhsa_accum_offset 256
  .amdhsa_group_segment_fixed_size 0
  .amdhsa_kernarg_size 40
  .amdhsa_user_sgpr_count 2
  .amdhsa_user_sgpr_kernarg_segment_ptr 1
  .amdhsa_system_sgpr_workgroup_id_x 1
.end_amdhsa_kernel
"""
    return hdr + a.text() + ftr

if __name__ == "__main__":
    ap = argparse.ArgumentParser()
    ap.add_argument("-o", default="standalone__fft_conv__vision.s")
    ap.add_argument("--diag", action="store_true")
    ap.add_argument("-v", action="store_true")
    ap.add_argument("--opt", action="append", default=[])
    args = ap.parse_args()
    opts = {}
    for o in args.opt:
        k, _, v = o.partition("=")
        opts[k] = int(v) if v.lstrip('-').isdigit() else (v or True)
    open(args.o, "w").write(gen(diag=args.diag, verbose=args.v, opts=opts))
```
